```python
import torch

def _softmax(x, axis=-1):
    return torch.softmax(x, dim=axis)
def _gelu(x):
    return torch.nn.functional.gelu(x, approximate="tanh")
def _silu(x):
    return torch.nn.functional.silu(x)
def _sigmoid(x):
    return torch.sigmoid(x)
def _layernorm(x, axis=-1, eps=1e-5):
    m = x.mean(dim=axis, keepdim=True)
    v = x.var(dim=axis, keepdim=True, unbiased=False)
    return (x - m) / torch.sqrt(v + eps)
def _scatter_add(tgt, idx, src, axis=0):
    return tgt.clone().index_add_(axis, idx, src)
def _segment_sum(src, seg, n):
    out = torch.zeros((n,) + src.shape[1:], dtype=src.dtype)
    return out.index_add_(0, seg, src)
def _pad(x, pw):
    flat = tuple(v for pair in reversed(pw) for v in pair)
    return torch.nn.functional.pad(x, flat)

kernel_name = 'parallel_sum__gqa_block_cached__glu_gated_bilinear__decode'

def setup_inputs():

    _w = (lambda a: (lambda t: t.to(torch.bfloat16) if t.is_floating_point() else t)(torch.as_tensor(a)))
    def _A_setup():
        B, Sq, D = 2, 1, 576
        Hq, Hkv, Sk, Dh = 32, 16, 4096, 128
        assert Hq % Hkv == 0, (Hq, Hkv)
        return {
            "x": _w((lambda *s: torch.randn(*s, dtype=torch.bfloat16) * 0.05)(B, Sq, D)),
            "k_cache": _w((lambda *s: torch.randn(*s, dtype=torch.bfloat16) * 1.6)(B, Hkv, Sk, Dh)),
            "v_cache": _w((lambda *s: torch.randn(*s, dtype=torch.bfloat16) * 0.8)(B, Hkv, Sk, Dh)),
            "wq": _w((lambda *s: torch.randn(*s, dtype=torch.bfloat16) * 1.6)(D, Hq * Dh) * (D ** -0.5)),
            "wo": _w((lambda *s: torch.randn(*s, dtype=torch.bfloat16) * 0.8)(Hq * Dh, D) * ((Hq * Dh) ** -0.5)),
        }
    _A_in = _A_setup()

    def _B_setup():
        B, S, D, F = 2, 1, 576, 4608
        return {
            "x": _w((lambda *s: torch.randn(*s, dtype=torch.bfloat16) * 0.05)(B, S, D)),
            "w_gate": _w((lambda *s: torch.randn(*s, dtype=torch.bfloat16) * 0.4)(D, F) * (D ** -0.5)),
            "w_up": _w((lambda *s: torch.randn(*s, dtype=torch.bfloat16) * 0.4)(D, F) * (D ** -0.5)),
            "w_down": _w((lambda *s: torch.randn(*s, dtype=torch.bfloat16) * 0.4)(F, D) * (F ** -0.5)),
        }
    _B_in = _B_setup()

    return {
        "A_x": _A_in["x"],
        "A_k_cache": _A_in["k_cache"],
        "A_v_cache": _A_in["v_cache"],
        "A_wq": _A_in["wq"],
        "A_wo": _A_in["wo"],
        "B_x": _B_in["x"],
        "B_w_gate": _B_in["w_gate"],
        "B_w_up": _B_in["w_up"],
        "B_w_down": _B_in["w_down"],
    }

def reference(A_x, A_k_cache, A_v_cache, A_wq, A_wo, B_x, B_w_gate, B_w_up, B_w_down):
    def _A_ref(x, k_cache, v_cache, wq, wo):
        B, Sq, D = x.shape
        Hq, Dh = 32, 128
        Hkv = k_cache.shape[1]
        rep = Hq // Hkv
        q = (lambda x, *d: x.permute(*d))((x @ wq).reshape(B, Sq, Hq, Dh), 0, 2, 1, 3)
        k = (lambda x, n, axis: torch.repeat_interleave(x, n, dim=axis))(k_cache, rep, axis=1)
        v = (lambda x, n, axis: torch.repeat_interleave(x, n, dim=axis))(v_cache, rep, axis=1)
        scores = torch.einsum("bhqd,bhkd->bhqk", q, k) * (Dh ** -0.5)
        p = _softmax(scores, axis=-1)
        o = torch.einsum("bhqk,bhkd->bhqd", p, v)
        return (lambda x, *d: x.permute(*d))(o, 0, 2, 1, 3).reshape(B, Sq, Hq * Dh) @ wo

    def _B_ref(x, w_gate, w_up, w_down):
        g = torch.einsum("bsd,df->bsf", x, w_gate)
        u = torch.einsum("bsd,df->bsf", x, w_up)
        h = g * u
        return torch.einsum("bsf,fd->bsd", h, w_down)

    x = A_x
    xn = _layernorm(x, axis=-1)
    return x + _A_ref(xn, A_k_cache, A_v_cache, A_wq, A_wo) + _B_ref(xn, B_w_gate, B_w_up, B_w_down)
```

```python
import re

TRANS = ("v_exp_f32", "v_log_f32", "v_rcp_f32", "v_rsq_f32", "v_sqrt_f32", "v_sin_f32", "v_cos_f32")


def v(i, n=1):
    return f"v{i}" if n == 1 else f"v[{i}:{i + n - 1}]"


def s(i, n=1):
    return f"s{i}" if n == 1 else f"s[{i}:{i + n - 1}]"


_reg = re.compile(r"^-?\|?(?:abs\()?([vsa])(?:(\d+)|\[(\d+):(\d+)\])\)?\|?$")


def regs(tok):
    tok = tok.strip()
    if tok in ("vcc", "vcc_lo", "vcc_hi"):
        return {("s", "vcc")}
    if tok in ("exec", "exec_lo", "exec_hi"):
        return {("s", "exec")}
    if tok == "m0":
        return {("s", "m0")}
    m = _reg.match(tok)
    if not m:
        return set()
    k = m.group(1)
    if m.group(2) is not None:
        return {(k, int(m.group(2)))}
    return {(k, i) for i in range(int(m.group(3)), int(m.group(4)) + 1)}


def mfma_passes(op):
    if "32x32x16" in op or "32x32x8" in op:
        return 8
    if "16x16x32" in op or "16x16x16" in op:
        return 4
    if "16x16x4_f32" in op:
        return 8
    if "32x32x2_f32" in op:
        return 16
    return 16


class Ins:
    __slots__ = ("op", "kind", "wr", "rd", "dpp", "trans", "passes", "srcC", "storedata", "ws", "text", "ab")


class Prog:
    def __init__(self):
        self.lines = []
        self.hist = []
        self.nnop = 0
        self.uid = 0

    def raw(self, text):
        self.lines.append(text)

    def comment(self, text):
        self.lines.append("    ; " + text)

    def label(self, name):
        self.lines.append(name + ":")

    def newlabel(self, base):
        self.uid += 1
        return f"L_{base}_{self.uid}"

    def classify(self, op, args, mods):
        I = Ins()
        I.op = op
        I.wr = set(); I.rd = set(); I.dpp = set(); I.trans = False; I.passes = 0
        I.srcC = set(); I.storedata = set(); I.ws = 1; I.ab = set()
        R = [regs(a) for a in args]
        if op.startswith("v_mfma"):
            I.kind = "mfma"
            I.passes = mfma_passes(op)
            I.wr = R[0]
            I.ab = R[1] | R[2]
            I.srcC = R[3]
            I.rd = R[1] | R[2] | R[3]
        elif op.startswith("v_"):
            I.kind = "valu"
            base = op.replace("_e32", "").replace("_e64", "").replace("_dpp", "").replace("_sdwa", "")
            I.trans = base in TRANS
            if base.startswith("v_permlane") and "swap" in base:
                I.wr = R[0] | R[1]; I.rd = R[0] | R[1]
            elif base.startswith("v_cmp"):
                I.wr = R[0]
                for r in R[1:]: I.rd |= r
                if base.startswith("v_cmpx"): I.wr |= {("s", "exec")}
            elif base in ("v_add_co_u32", "v_sub_co_u32", "v_addc_co_u32", "v_subb_co_u32", "v_subrev_co_u32", "v_div_scale_f32"):
                I.wr = R[0] | R[1]
                for r in R[2:]: I.rd |= r
            else:
                I.wr = R[0]
                for r in R[1:]: I.rd |= r
                if base in ("v_fmac_f32", "v_dot2c_f32_bf16", "v_writelane_b32") or "d16" in base:
                    I.rd |= R[0]
                if base == "v_cndmask_b32" and len(args) == 3:
                    I.rd |= {("s", "vcc")}
                if base in ("v_div_fmas_f32",):
                    I.rd |= {("s", "vcc")}
            if op.endswith("_dpp"):
                I.dpp = R[1]
                I.rd |= R[0]
        elif op.startswith("buffer_") or op.startswith("global_"):
            I.kind = "vmem"
            lds = "lds" in mods.split()
            if "load" in op and not lds:
                I.wr = R[0]
                for r in R[1:]: I.rd |= r
                if "d16" in op: I.rd |= R[0]
            elif "atomic" in op:
                for r in R: I.rd |= r
                if "sc0" in mods.split(): I.wr = R[0]
            else:
                for r in R: I.rd |= r
                if "store" in op and ("x4" in op or "x3" in op):
                    I.storedata = R[0] if op.startswith("buffer_") else R[1]
                if lds:
                    I.rd |= {("s", "m0")}
                    I.kind = "vmem_lds"
        elif op.startswith("ds_"):
            I.kind = "ds"
            if op.startswith("ds_read") or op.startswith("ds_bpermute") or op.startswith("ds_swizzle") or "_rtn" in op:
                I.wr = R[0]
                for r in R[1:]: I.rd |= r
            else:
                for r in R: I.rd |= r
        elif op.startswith("s_"):
            I.kind = "salu"
            if op in ("s_nop",):
                I.ws = int(args[0], 0) + 1
            elif op.startswith("s_cmp") or op.startswith("s_bitcmp") or op in ("s_waitcnt", "s_barrier", "s_sleep", "s_setprio", "s_endpgm") or op.startswith("s_cbranch") or op == "s_branch":
                for r in R: I.rd |= r
            else:
                if R: I.wr = R[0]
                for r in R[1:]: I.rd |= r
                if "saveexec" in op: I.wr |= {("s", "exec")}
        else:
            raise ValueError("unknown op " + op)
        return I

    def needed(self, I):
        need = 0
        dist = 0
        for P in reversed(self.hist):
            req = 0
            pw_v = {r for r in P.wr if r[0] == "v"}
            pw_s = {r for r in P.wr if r[0] == "s"}
            if P.kind == "valu":
                if I.kind == "valu":
                    if pw_v & I.dpp: req = max(req, 2)
                    if I.op.startswith("v_permlane") and (pw_v & I.rd): req = max(req, 2)
                    if P.trans and not I.trans and (pw_v & I.rd): req = max(req, 1)
                    if P.trans and I.trans and (pw_v & I.rd): req = max(req, 1)
                    if (I.op.startswith("v_readlane") or I.op.startswith("v_readfirstlane")) and (pw_v & I.rd): req = max(req, 1)
                    if pw_s & I.rd:
                        req = max(req, 2)
                        if I.op.startswith("v_readlane") or I.op.startswith("v_writelane"): req = max(req, 4)
                    if ("s", "exec") in pw_s:
                        req = max(req, 5 if I.dpp else 4 if (I.op.startswith("v_read") or I.op.startswith("v_permlane") or I.op.startswith("v_writelane")) else 0)
                if I.kind == "mfma":
                    if pw_v & I.rd: req = max(req, 2)
                    if ("s", "exec") in pw_s: req = max(req, 4)
                if I.kind in ("vmem", "vmem_lds"):
                    if pw_s & I.rd: req = max(req, 5)
                if I.kind == "salu":
                    if pw_s & I.rd: req = max(req, 1)
            if P.kind == "mfma":
                n = {2: 5, 4: 8, 8: 12, 16: 20}[P.passes]
                nC = {2: 4, 4: 6, 8: 10, 16: 18}[P.passes]
                war = {2: 1, 4: 3, 8: 7, 16: 15}[P.passes]
                if I.kind == "valu":
                    if P.wr & (I.rd | I.wr): req = max(req, n)
                    if P.srcC & I.wr: req = max(req, war)
                elif I.kind in ("vmem", "vmem_lds", "ds"):
                    if P.wr & (I.rd | I.wr): req = max(req, n)
                elif I.kind == "mfma":
                    if P.wr & I.ab: req = max(req, n)
                    if P.wr & I.srcC:
                        if not (P.wr == I.srcC and P.passes == I.passes): req = max(req, nC)
                        elif P.passes == 2: req = max(req, 2)
                    if (P.wr & I.wr) and not (P.wr & I.srcC): req = max(req, nC)
            if P.kind == "salu":
                if ("s", "m0") in P.wr and I.kind == "vmem_lds": req = max(req, 1)
            if P.kind == "vmem" and P.storedata and I.kind == "valu":
                if P.storedata & I.wr: req = max(req, 2)
            if P.kind == "vmem" and P.storedata and I.kind in ("vmem", "ds"):
                if P.storedata & I.wr: req = max(req, 1)
            if req > dist:
                need = max(need, req - dist)
            dist += P.ws
            if dist > 24:
                break
        return need

    def pending_max(self):
        need = 0
        dist = 0
        for P in reversed(self.hist):
            req = 0
            if P.kind == "valu":
                if any(r[0] == "v" for r in P.wr): req = 2
                if any(r[0] == "s" for r in P.wr): req = 5
            if P.kind == "mfma":
                req = {2: 5, 4: 8, 8: 12, 16: 20}[P.passes]
            if P.kind == "salu" and ("s", "m0") in P.wr: req = 1
            if P.kind == "vmem" and P.storedata: req = 2
            if req > dist:
                need = max(need, req - dist)
            dist += P.ws
            if dist > 24:
                break
        return need

    def _nop(self, n):
        while n > 0:
            k = min(n, 16)
            I = self.classify("s_nop", [str(k - 1)], "")
            self.lines.append(f"    s_nop {k - 1}")
            self.hist.append(I)
            self.nnop += k
            n -= k

    def __call__(self, op, *args, mods=""):
        args = [str(a) for a in args]
        I = self.classify(op, args, mods)
        if op.startswith("s_cbranch") or op == "s_branch":
            n = self.pending_max() - 1
        else:
            n = self.needed(I)
        if n > 0:
            self._nop(n)
        text = "    " + op + (" " + ", ".join(args) if args else "") + (" " + mods if mods else "")
        self.lines.append(text)
        self.hist.append(I)
        if len(self.hist) > 64:
            self.hist = self.hist[-48:]

    def text(self):
        return "\n".join(self.lines) + "\n"
```

```python
import sys
from asmdsl import Prog, v, s

NAME = "parallel_sum__gqa_block_cached__glu_gated_bilinear__decode"
KNAME = NAME + "_kernel"

L_CNT = 0
C_A, C_XN, C_Q, C_C, C_O = 0, 4, 8, 12, 16
L_DUMMY = 128
L_XNA = 256
L_QA = 2560
L_HA = 3072
L_OA = 3200
L_ST = 3328
L_RED = 3584
L_OW = 8192
L_C = 24576
LDS_BYTES = L_C + 45 * 1024

WS_EPOCH = 0
WS_A = 0x1000
WS_O = 0x40000
WS_P = 0x100000
WS_DBG = 0x400000
WS_SIZE = 0x800000

S_WG = 2
SRD_K, SRD_V, SRD_A, SRD_WS, SRD_WO, SRD_WD, SRD_X, SRD_OUT = 4, 8, 12, 16, 20, 24, 28, 32
S_W = 36
S_H = 37
S_M = 38
S_B = 39
KA = 40
S_MASK = 64
S_SELLO, S_SELHI = 80, 81
S_TAG = 82
S_EPOCH = 83
S_ROLE = 84
S_SLOT = 85
S_RS = 86
S_ABASE = 87
S_KV = 88
S_T0, S_T1, S_T2, S_T3 = 89, 90, 91, 92
S_HALF = 93
S_F0 = 94
S_SP = 95
S_X0, S_X1 = 96, 97
S_Y0, S_Y1 = 98, 99
S_TMASK = 100
S_RHO = 101

V_TID, V_LANE, V_G, V_N = 0, 1, 2, 3
V_T = 4
V_A = 12
V_ACC = 16
V_TB = 20
V_S = 28
V_P = 36
V_K = 40
V_V = 72
V_X = 104
V_TAG = 124
V_STAMP = 125

LOG2E = 1.4426950408889634
SPIN_MAX = 100000

import struct


def f2u(x):
    return struct.unpack("<I", struct.pack("<f", x))[0]


def gen(dbg=0, stamps=False, issuers=(12, 13, 14), kvnt="nt", wnt="nt", cnt="nt", poll_sleep=2):
    P = Prog()
    I = P

    def stamp(idx):
        if not stamps:
            return
        I("s_memrealtime", s(S_X0, 2))
        I("s_waitcnt", "lgkmcnt(0)")
        I("v_mov_b32", v(V_STAMP), s(S_X0))
        I("s_lshl_b32", s(S_X1), s(S_WG), 4)
        I("s_add_u32", s(S_X1), s(S_X1), s(S_W))
        I("s_lshl_b32", s(S_X1), s(S_X1), 6)
        I("s_add_u32", s(S_X1), s(S_X1), WS_DBG + idx * 4)
        I("v_mov_b32", v(126), 0)
        I("s_mov_b64", s(S_Y0, 2), "exec")
        I("s_mov_b64", "exec", 1)
        I("buffer_store_dword", v(V_STAMP), v(126), s(SRD_WS, 4), s(S_X1), mods="offen")
        I("s_mov_b64", "exec", s(S_Y0, 2))

    def lds_spin(off, val, name, sleep=1):
        L = P.newlabel(name)
        Ld = P.newlabel(name + "d")
        I("v_mov_b32", v(V_T), off)
        I("s_mov_b32", s(S_SP), 0)
        P.label(L)
        I("ds_read_b32", v(V_T + 1), v(V_T))
        I("s_waitcnt", "lgkmcnt(0)")
        I("v_readfirstlane_b32", s(S_T0), v(V_T + 1))
        I("s_cmp_ge_u32", s(S_T0), val)
        I("s_cbranch_scc1", Ld)
        if sleep:
            I("s_sleep", sleep)
        I("s_add_u32", s(S_SP), s(S_SP), 1)
        I("s_cmp_lt_u32", s(S_SP), SPIN_MAX)
        I("s_cbranch_scc1", L)
        P.label(Ld)

    def lds_inc(off):
        I("v_mov_b32", v(V_T), off)
        I("v_mov_b32", v(V_T + 1), 1)
        I("s_mov_b64", s(S_Y0, 2), "exec")
        I("s_mov_b64", "exec", 1)
        I("ds_add_u32", v(V_T), v(V_T + 1))
        I("s_mov_b64", "exec", s(S_Y0, 2))

    def row_allreduce(op, x, t):
        for ctl in ("quad_perm:[1,0,3,2]", "quad_perm:[2,3,0,1]", "row_half_mirror", "row_mirror"):
            I(op + "_dpp", v(x), v(x), v(x), mods=ctl + " row_mask:0xf bank_mask:0xf")

    def x16(op, x, t):
        I("v_mov_b32", v(t), v(x))
        I("v_permlane16_swap_b32", v(t), v(x))
        I(op, v(x), v(x), v(t))

    def x32(op, x, t):
        I("v_mov_b32", v(t), v(x))
        I("v_permlane32_swap_b32", v(t), v(x))
        I(op, v(x), v(x), v(t))

    def x8(op, x):
        I(op + "_dpp", v(x), v(x), v(x), mods="row_ror:8 row_mask:0xf bank_mask:0xf")

    def bf16_round(dst, src):
        I("v_cvt_pk_bf16_f32", v(dst), v(src), v(src))
        I("v_lshlrev_b32", v(dst), 16, v(dst))

    def tag_encode(regs_):
        for r in regs_:
            I("v_add_u32", v(r), 0x800, v(r))
        for r in regs_:
            I("v_bfi_b32", v(r), s(S_TMASK), v(V_TAG), v(r))

    def tag_check(regs_, acc, tmp, first=True):
        for k, r in enumerate(regs_):
            if first and k == 0:
                I("v_xor_b32", v(acc), v(V_TAG), v(r))
            else:
                I("v_xor_b32", v(tmp), v(V_TAG), v(r))
                I("v_or_b32", v(acc), v(acc), v(tmp))

    def tag_strip(regs_):
        for r in regs_:
            I("v_and_b32", v(r), 0xFFFFF000, v(r))

    def masked_gemv(A, nA, Bfun, acc, first_zero, mf, TA):
        for e in range(8):
            ta = TA[e % len(TA)]
            b = Bfun(e)
            for k in range(nA):
                I("v_cndmask_b32_e64", v(ta + k), 0, v(A + k), s(S_MASK + 2 * e, 2))
            c = "0" if (first_zero and e == 0) else v(acc, 4)
            I(mf, v(acc, 4), v(ta, nA), v(b, nA), c)

    hdr = []
    hdr.append(f"; @launch grid=(256,1,1) block=(1024,1,1) lds={LDS_BYTES}")
    hdr.append('.amdgcn_target "amdgcn-amd-amdhsa--gfx950"')
    hdr.append(".text")
    hdr.append(f".globl {KNAME}")
    hdr.append(".p2align 8")
    hdr.append(f".type {KNAME},@function")
    hdr.append(f"{KNAME}:")

    I("s_cmp_ge_u32", s(S_WG), 256)
    I("s_cbranch_scc1", "L_end")
    I("s_load_dwordx16", s(KA, 16), s(0, 2), 0)
    I("s_load_dwordx8", s(KA + 16, 8), s(0, 2), 64)
    I("v_and_b32", v(V_LANE), 63, v(V_TID))
    I("v_lshrrev_b32", v(V_T), 6, v(V_TID))
    I("v_lshrrev_b32", v(V_G), 4, v(V_LANE))
    I("v_and_b32", v(V_N), 15, v(V_LANE))
    I("v_readfirstlane_b32", s(S_W), v(V_T))
    I("s_lshr_b32", s(S_H), s(S_WG), 4)
    I("s_and_b32", s(S_M), s(S_WG), 15)
    I("s_lshr_b32", s(S_B), s(S_M), 3)
    I("s_cmp_lg_u32", s(S_W), 0)
    I("s_cbranch_scc1", "L_nozero")
    I("v_lshlrev_b32", v(V_T), 2, v(V_LANE))
    I("v_mov_b32", v(V_T + 1), 0)
    I("ds_write_b32", v(V_T), v(V_T + 1), mods=f"offset:{L_CNT}")
    I("ds_write_b32", v(V_T), v(V_T + 1), mods=f"offset:{L_HA}")
    P.label("L_nozero")
    for e in range(8):
        i0 = (e & 3) + 8 * (e >> 2)
        m16 = (1 << i0) | (1 << (i0 + 4))
        m32 = m16 | (m16 << 16)
        I("s_mov_b32", s(S_MASK + 2 * e), hex(m32))
        I("s_mov_b32", s(S_MASK + 2 * e + 1), hex(m32))
    I("s_mov_b32", s(S_SELLO), "0x05040100")
    I("s_mov_b32", s(S_SELHI), "0x07060302")
    I("s_mov_b32", s(S_TMASK), "0xfff")
    I("s_waitcnt", "lgkmcnt(0)")

    def srd(base, ptr, size):
        I("s_mov_b32", s(base), s(ptr))
        I("s_mov_b32", s(base + 1), s(ptr + 1))
        I("s_mov_b32", s(base + 2), hex(size))
        I("s_mov_b32", s(base + 3), "0x20000")

    srd(SRD_K, KA + 2, 0x2000000)
    srd(SRD_V, KA + 4, 0x2000000)
    srd(SRD_WS, KA + 22, WS_SIZE)
    srd(SRD_WO, KA + 8, 4096 * 1152)
    srd(SRD_WD, KA + 16, 4608 * 1152)
    srd(SRD_X, KA + 0, 2304)
    srd(SRD_OUT, KA + 18, 2304)
    I("s_barrier")
    stamp(0)
    I("s_load_dword", s(S_EPOCH), s(KA + 22, 2), WS_EPOCH)

    I("s_mul_i32", s(S_T0), s(S_H), 9)
    I("s_add_u32", s(S_SLOT), s(S_T0), s(S_M))
    I("s_and_b32", s(S_HALF), s(S_SLOT), 1)
    I("s_lshr_b32", s(S_T1), s(S_SLOT), 2)
    I("s_lshl_b32", s(S_ABASE), s(S_T1), 8)
    I("s_mov_b32", s(S_RS), 9216)
    I("s_bitcmp1_b32", s(S_SLOT), 1)
    I("s_cselect_b32", s(SRD_A), s(KA + 14), s(KA + 12))
    I("s_cselect_b32", s(SRD_A + 1), s(KA + 15), s(KA + 13))
    I("s_mov_b32", s(SRD_A + 2), hex(576 * 9216))
    I("s_mov_b32", s(SRD_A + 3), "0x20000")
    I("s_mov_b32", s(S_ROLE), 1)
    I("s_cmp_lt_u32", s(S_M), 9)
    I("s_cbranch_scc1", "L_role_done")
    I("s_sub_u32", s(S_T0), s(S_M), 8)
    I("s_lshr_b32", s(S_T0), s(S_T0), 1)
    I("s_and_b32", s(S_HALF), s(S_T0), 1)
    I("s_lshl_b32", s(S_T1), s(S_H), 2)
    I("s_add_u32", s(S_SLOT), s(S_T1), s(S_T0))
    I("s_lshr_b32", s(S_T2), s(S_SLOT), 1)
    I("s_lshl_b32", s(S_ABASE), s(S_T2), 8)
    I("s_add_u32", s(S_SLOT), s(S_SLOT), 144)
    I("s_mov_b32", s(S_RS), 8192)
    I("s_mov_b32", s(SRD_A), s(KA + 6))
    I("s_mov_b32", s(SRD_A + 1), s(KA + 7))
    I("s_mov_b32", s(SRD_A + 2), hex(576 * 8192))
    I("s_cmp_eq_u32", s(S_M), 9)
    I("s_cbranch_scc1", "L_role_done")
    I("s_and_b32", s(S_ROLE), s(S_M), 1)
    I("s_xor_b32", s(S_ROLE), s(S_ROLE), 1)
    P.label("L_role_done")
    I("s_mul_i32", s(S_T0), s(S_HALF), 288)
    I("s_mul_i32", s(S_T0), s(S_T0), s(S_RS))
    I("s_add_u32", s(S_ABASE), s(S_ABASE), s(S_T0))
    I("s_lshl_b32", s(S_T0), s(S_B), 4)
    I("s_add_u32", s(S_T0), s(S_T0), s(S_H))
    I("s_lshl_b32", s(S_KV), s(S_T0), 20)
    I("s_and_b32", s(S_T0), s(S_M), 7)
    I("s_lshl_b32", s(S_T0), s(S_T0), 17)
    I("s_add_u32", s(S_KV), s(S_KV), s(S_T0))
    I("s_lshl_b32", s(S_T0), s(S_W), 13)
    I("s_add_u32", s(S_KV), s(S_KV), s(S_T0))
    I("s_mul_i32", s(S_F0), s(S_WG), 18)

    I("s_cmp_eq_u32", s(S_W), 15)
    I("s_cbranch_scc1", "L_service")
    I("s_cmp_eq_u32", s(S_ROLE), 0)
    I("s_cbranch_scc1", "L_attn")
    I("s_cmp_ge_u32", s(S_W), 9)
    I("s_cbranch_scc1", "L_attn")

    I("v_mul_lo_u32", v(V_T + 2), v(V_G), s(S_RS))
    I("v_lshlrev_b32", v(V_T + 3), 4, v(V_N))
    I("v_add_u32", v(V_T + 2), v(V_T + 2), v(V_T + 3))
    I("s_lshl_b32", s(S_T0), s(S_W), 5)
    I("s_mul_i32", s(S_T0), s(S_T0), s(S_RS))
    I("s_add_u32", s(S_T0), s(S_T0), s(S_ABASE))
    I("s_lshl_b32", s(S_T1), s(S_RS), 2)
    for j in range(8):
        I("buffer_load_dwordx4", v(V_V + 4 * j, 4), v(V_T + 2), s(SRD_A, 4), s(S_T0), mods="offen " + wnt)
        if j < 7:
            I("s_add_u32", s(S_T0), s(S_T0), s(S_T1))
    lds_spin(L_CNT + C_XN, 1, "xn")
    stamp(1)
    I("v_bfe_u32", v(V_T + 2), v(V_N), 2, 1)
    I("v_mul_u32_u24", v(V_T + 2), 1152, v(V_T + 2))
    I("v_lshlrev_b32", v(V_T + 3), 4, v(V_G))
    I("v_add_u32", v(V_T + 2), v(V_T + 2), v(V_T + 3))
    I("s_mul_i32", s(S_T0), s(S_HALF), 9)
    I("s_add_u32", s(S_T0), s(S_T0), s(S_W))
    I("s_lshl_b32", s(S_T0), s(S_T0), 6)
    I("v_add_u32", v(V_T + 2), s(S_T0), v(V_T + 2))
    I("ds_read_b128", v(V_A, 4), v(V_T + 2), mods=f"offset:{L_XNA}")
    I("s_waitcnt", "vmcnt(0) lgkmcnt(0)")
    stamp(2)

    def Bperm8(src):
        def f(e):
            tb = V_TB + 4 * (e & 1)
            dw = e >> 1
            sel = S_SELHI if (e & 1) else S_SELLO
            for k in range(4):
                I("v_perm_b32", v(tb + k), v(src + 4 * (2 * k + 1) + dw), v(src + 4 * (2 * k) + dw), s(sel))
            return tb
        return f

    masked_gemv(V_A, 4, Bperm8(V_V), V_ACC, True, "v_mfma_f32_16x16x32_bf16", [V_S, V_S + 4])
    I("s_lshl_b32", s(S_T0), s(S_W), 10)
    I("v_lshlrev_b32", v(V_T + 2), 4, v(V_LANE))
    I("v_add_u32", v(V_T + 2), s(S_T0), v(V_T + 2))
    I("ds_write_b128", v(V_T + 2), v(V_ACC, 4), mods=f"offset:{L_OW}")
    lds_inc(L_CNT + C_A)
    stamp(3)
    I("s_branch", "L_attn")

    P.label("L_service")
    I("s_setprio", 3)
    XR = V_K
    XF = V_V
    I("v_lshrrev_b32", v(V_T), 5, v(V_LANE))
    I("v_mul_u32_u24", v(V_T + 1), 1152, v(V_T))
    I("v_and_b32", v(V_T + 2), 31, v(V_LANE))
    I("v_lshlrev_b32", v(V_T + 3), 2, v(V_T + 2))
    I("v_add_u32", v(V_T + 3), v(V_T + 3), v(V_T + 1))
    for i in range(9):
        I("buffer_load_dword", v(XR + i), v(V_T + 3), s(SRD_X, 4), 0, mods=f"offen offset:{128 * i}")
    I("v_bfe_u32", v(V_T + 4), v(V_LANE), 4, 1)
    I("v_lshlrev_b32", v(V_T + 4), 6, v(V_T + 4))
    I("v_add_u32", v(V_T + 4), v(V_T + 4), v(V_T + 1))
    I("v_and_b32", v(V_T + 5), 1, v(V_LANE))
    I("v_lshlrev_b32", v(V_T + 5), 5, v(V_T + 5))
    I("v_add_u32", v(V_T + 4), v(V_T + 4), v(V_T + 5))
    I("v_bfe_u32", v(V_T + 5), v(V_LANE), 1, 3)
    I("v_lshlrev_b32", v(V_T + 5), 1, v(V_T + 5))
    I("v_add_u32", v(V_T + 4), v(V_T + 4), v(V_T + 5))
    I("s_waitcnt", "vmcnt(0)")
    for i in range(9):
        I("v_lshlrev_b32", v(XF + 2 * i), 16, v(XR + i))
        I("v_and_b32", v(XF + 2 * i + 1), "0xffff0000", v(XR + i))
    SUM = V_A
    I("v_add_f32", v(SUM), v(XF), v(XF + 1))
    for i in range(2, 18):
        I("v_add_f32", v(SUM), v(SUM), v(XF + i))
    row_allreduce("v_add_f32", SUM, None)
    x16("v_add_f32", SUM, V_A + 1)
    I("v_mul_f32", v(SUM), hex(f2u(1.0 / 576.0)), v(SUM))
    VAR = V_A + 1
    I("v_sub_f32", v(V_A + 2), v(XF), v(SUM))
    I("v_mul_f32", v(VAR), v(V_A + 2), v(V_A + 2))
    for i in range(1, 18):
        I("v_sub_f32", v(V_A + 2), v(XF + i), v(SUM))
        I("v_fmac_f32", v(VAR), v(V_A + 2), v(V_A + 2))
    row_allreduce("v_add_f32", VAR, None)
    x16("v_add_f32", VAR, V_A + 2)
    I("v_mul_f32", v(VAR), hex(f2u(1.0 / 576.0)), v(VAR))
    bf16_round(VAR, VAR)
    I("v_add_f32", v(VAR), hex(f2u(1e-5)), v(VAR))
    bf16_round(VAR, VAR)
    I("v_sqrt_f32", v(VAR), v(VAR))
    bf16_round(VAR, VAR)
    bf16_round(SUM, SUM)
    RCP = V_A + 2
    I("v_rcp_f32", v(RCP), v(VAR))
    T0, T1, T2, T3 = V_ACC, V_ACC + 1, V_ACC + 2, V_ACC + 3
    for i in range(9):
        a, b = XF + 2 * i, XF + 2 * i + 1
        I("v_sub_f32", v(a), v(a), v(SUM))
        I("v_sub_f32", v(b), v(b), v(SUM))
        I("v_cvt_pk_bf16_f32", v(T0), v(a), v(b))
        I("v_lshlrev_b32", v(a), 16, v(T0))
        I("v_and_b32", v(b), "0xffff0000", v(T0))
        I("v_mul_f32", v(T1), v(a), v(RCP))
        I("v_mul_f32", v(T2), v(b), v(RCP))
        I("v_fma_f32", v(a), "-" + v(T1), v(VAR), v(a))
        I("v_fma_f32", v(b), "-" + v(T2), v(VAR), v(b))
        I("v_fma_f32", v(T1), v(a), v(RCP), v(T1))
        I("v_fma_f32", v(T2), v(b), v(RCP), v(T2))
        I("v_cvt_pk_bf16_f32", v(XR + i), v(T1), v(T2))
        I("ds_write_b16", v(V_T + 4), v(XR + i), mods=f"offset:{L_XNA + 128 * i}")
        I("ds_write_b16_d16_hi", v(V_T + 4), v(XR + i), mods=f"offset:{L_XNA + 128 * i + 16}")
    I("v_mov_b32", v(V_T), L_CNT + C_XN)
    I("v_mov_b32", v(V_T + 1), 1)
    I("ds_write_b32", v(V_T), v(V_T + 1))
    I("s_waitcnt", "lgkmcnt(0)")
    I("s_add_u32", s(S_TAG), s(S_EPOCH), 1)
    I("s_and_b32", s(S_TAG), s(S_TAG), "0xfff")
    I("v_mov_b32", v(V_TAG), s(S_TAG))
    stamp(1)
    I("s_cmp_eq_u32", s(S_ROLE), 0)
    I("s_cbranch_scc1", "L_noA")
    lds_spin(L_CNT + C_A, 9, "ca")
    I("v_lshlrev_b32", v(V_T + 2), 4, v(V_LANE))
    for k in range(9):
        I("ds_read_b128", v(V_K + 4 * k, 4), v(V_T + 2), mods=f"offset:{L_OW + 1024 * k}")
    I("v_and_b32", v(V_T + 3), 1, v(V_G))
    I("v_lshlrev_b32", v(V_T + 3), 9, v(V_T + 3))
    I("v_lshlrev_b32", v(V_T + 4), 5, v(V_N))
    I("v_add_u32", v(V_T + 3), v(V_T + 3), v(V_T + 4))
    I("v_lshrrev_b32", v(V_T + 4), 1, v(V_G))
    I("v_lshlrev_b32", v(V_T + 4), 4, v(V_T + 4))
    I("v_add_u32", v(V_T + 3), v(V_T + 3), v(V_T + 4))
    I("s_lshl_b32", s(S_T0), s(S_SLOT), 10)
    I("s_add_u32", s(S_T0), s(S_T0), WS_A)
    I("s_waitcnt", "lgkmcnt(0)")
    for k in range(1, 9):
        for c in range(4):
            I("v_add_f32", v(V_K + c), v(V_K + c), v(V_K + 4 * k + c))
    tag_encode([V_K + c for c in range(4)])
    I("buffer_store_dwordx4", v(V_K, 4), v(V_T + 3), s(SRD_WS, 4), s(S_T0), mods="offen sc1")
    stamp(2)
    P.label("L_noA")
    I("v_lshrrev_b32", v(V_T + 2), 5, v(V_LANE))
    I("v_lshlrev_b32", v(V_T + 3), 11, v(V_T + 2))
    I("v_and_b32", v(V_T + 4), 31, v(V_LANE))
    I("v_lshlrev_b32", v(V_T + 5), 4, v(V_T + 4))
    I("v_add_u32", v(V_T + 3), v(V_T + 3), v(V_T + 5))
    I("s_lshl_b32", s(S_T0), s(S_B), 9)
    I("v_add_u32", v(V_T + 3), s(S_T0), v(V_T + 3))
    I("s_lshl_b32", s(S_T0), s(S_H), 12)
    I("s_add_u32", s(S_T1), s(S_T0), WS_A + 144 * 1024)
    I("s_mov_b32", s(S_SP), 0)
    P.label("L_qpoll")
    I("buffer_load_dwordx4", v(V_K, 4), v(V_T + 3), s(SRD_WS, 4), s(S_T1), mods="offen sc1")
    I("buffer_load_dwordx4", v(V_K + 4, 4), v(V_T + 3), s(SRD_WS, 4), s(S_T1), mods="offen offset:1024 sc1")
    I("s_waitcnt", "vmcnt(0)")
    tag_check([V_K + c for c in range(8)], V_T + 6, V_T + 7)
    I("v_and_b32", v(V_T + 6), s(S_TMASK), v(V_T + 6))
    I("v_cmp_ne_u32", "vcc", 0, v(V_T + 6))
    I("s_cbranch_vccz", "L_qok")
    I("s_sleep", poll_sleep)
    I("s_add_u32", s(S_SP), s(S_SP), 1)
    I("s_cmp_lt_u32", s(S_SP), SPIN_MAX)
    I("s_cbranch_scc1", "L_qpoll")
    P.label("L_qok")
    tag_strip([V_K + c for c in range(8)])
    for c in range(4):
        I("v_add_f32", v(V_K + c), v(V_K + c), v(V_K + 4 + c))
    I("v_cvt_pk_bf16_f32", v(V_K + 8), v(V_K), v(V_K + 1))
    I("v_cvt_pk_bf16_f32", v(V_K + 9), v(V_K + 2), v(V_K + 3))
    I("v_lshlrev_b32", v(V_T + 2), 8, v(V_T + 2))
    I("v_lshlrev_b32", v(V_T + 4), 3, v(V_T + 4))
    I("v_add_u32", v(V_T + 2), v(V_T + 2), v(V_T + 4))
    I("ds_write_b64", v(V_T + 2), v(V_K + 8, 2), mods=f"offset:{L_QA}")
    I("v_mov_b32", v(V_T), L_CNT + C_Q)
    I("v_mov_b32", v(V_T + 1), 1)
    I("ds_write_b32", v(V_T), v(V_T + 1))
    stamp(3)
    I("v_and_b32", v(V_T + 2), 7, v(V_LANE))
    I("v_bfe_u32", v(V_T + 3), v(V_LANE), 3, 1)
    I("s_and_b32", s(S_T0), s(S_F0), "0xfffffffc")
    I("v_lshlrev_b32", v(V_T + 4), 2, v(V_T + 2))
    I("v_add_u32", v(V_T + 4), s(S_T0), v(V_T + 4))
    I("v_lshrrev_b32", v(V_T + 5), 7, v(V_T + 4))
    I("v_lshlrev_b32", v(V_T + 5), 12, v(V_T + 5))
    I("v_and_b32", v(V_T + 4), 127, v(V_T + 4))
    I("v_lshlrev_b32", v(V_T + 4), 2, v(V_T + 4))
    I("v_add_u32", v(V_T + 5), v(V_T + 5), v(V_T + 4))
    I("v_lshlrev_b32", v(V_T + 4), 9, v(V_T + 3))
    I("v_add_u32", v(V_T + 5), v(V_T + 5), v(V_T + 4))
    I("s_mov_b32", s(S_T1), WS_A)
    I("s_mov_b64", "exec", "0x1f1f")
    I("s_mov_b32", s(S_SP), 0)
    P.label("L_hpoll")
    for k in range(4):
        I("buffer_load_dwordx4", v(V_K + 4 * k, 4), v(V_T + 5), s(SRD_WS, 4), s(S_T1), mods=f"offen offset:{1024 * k} sc1")
    I("s_waitcnt", "vmcnt(0)")
    tag_check([V_K + c for c in range(16)], V_T + 6, V_T + 7)
    I("v_and_b32", v(V_T + 6), s(S_TMASK), v(V_T + 6))
    I("v_cmp_ne_u32", "vcc", 0, v(V_T + 6))
    I("s_cbranch_vccz", "L_hok")
    I("s_sleep", poll_sleep)
    I("s_add_u32", s(S_SP), s(S_SP), 1)
    I("s_cmp_lt_u32", s(S_SP), SPIN_MAX)
    I("s_cbranch_scc1", "L_hpoll")
    P.label("L_hok")
    tag_strip([V_K + c for c in range(16)])
    I("s_and_b32", s(S_T0), s(S_F0), 3)
    I("v_lshlrev_b32", v(V_T + 4), 2, v(V_T + 2))
    I("v_subrev_u32", v(V_T + 4), s(S_T0), v(V_T + 4))
    I("v_lshlrev_b32", v(V_T + 3), 6, v(V_T + 3))
    for c in range(4):
        I("v_add_f32", v(V_K + c), v(V_K + c), v(V_K + 4 + c))
        I("v_add_f32", v(V_K + 8 + c), v(V_K + 8 + c), v(V_K + 12 + c))
        bf16_round(V_K + c, V_K + c)
        bf16_round(V_K + 8 + c, V_K + 8 + c)
        I("v_mul_f32", v(V_K + c), v(V_K + c), v(V_K + 8 + c))
        I("v_cvt_pk_bf16_f32", v(V_K + c), v(V_K + c), v(V_K + c))
        I("v_add_u32", v(V_T + 6), c, v(V_T + 4))
        I("v_and_b32", v(V_T + 7), 3, v(V_T + 6))
        I("v_lshlrev_b32", v(V_T + 7), 4, v(V_T + 7))
        I("v_add_u32", v(V_T + 7), v(V_T + 7), v(V_T + 3))
        I("v_lshrrev_b32", v(V_X), 2, v(V_T + 6))
        I("v_lshlrev_b32", v(V_X), 1, v(V_X))
        I("v_add_u32", v(V_T + 7), v(V_T + 7), v(V_X))
        I("v_add_u32", v(V_T + 7), L_HA, v(V_T + 7))
        I("v_cmp_gt_u32", "vcc", 18, v(V_T + 6))
        I("v_mov_b32", v(V_X), L_DUMMY)
        I("v_cndmask_b32", v(V_T + 7), v(V_X), v(V_T + 7), "vcc")
        I("ds_write_b16", v(V_T + 7), v(V_K + c))
    I("s_mov_b64", "exec", -1)
    stamp(4)
    I("s_setprio", 0)

    P.label("L_attn")
    I("v_and_b32", v(V_T + 2), 3, v(V_LANE))
    I("v_lshlrev_b32", v(V_T + 2), 4, v(V_T + 2))
    I("v_bfe_u32", v(V_T + 3), v(V_LANE), 2, 2)
    I("v_lshlrev_b32", v(V_T + 3), 8, v(V_T + 3))
    I("v_add_u32", v(V_T + 2), v(V_T + 2), v(V_T + 3))
    I("v_lshlrev_b32", v(V_T + 3), 6, v(V_G))
    I("v_add_u32", v(V_T + 2), v(V_T + 2), v(V_T + 3))
    I("v_lshlrev_b32", v(V_T + 3), 4, v(V_LANE))
    I("s_add_u32", s(S_T0), s(S_KV), 4096)
    for i in range(8):
        so = S_KV if i < 4 else S_T0
        I("buffer_load_dwordx4", v(V_K + 4 * i, 4), v(V_T + 2), s(SRD_K, 4), s(so), mods=f"offen offset:{1024 * (i & 3)} {kvnt}")
    for i in range(8):
        so = S_KV if i < 4 else S_T0
        I("buffer_load_dwordx4", v(V_V + 4 * i, 4), v(V_T + 3), s(SRD_V, 4), s(so), mods=f"offen offset:{1024 * (i & 3)} {kvnt}")
    stamp(5)
    lds_spin(L_CNT + C_Q, 1, "q")
    I("s_add_u32", s(S_TAG), s(S_EPOCH), 1)
    I("s_and_b32", s(S_TAG), s(S_TAG), "0xfff")
    I("v_mov_b32", v(V_TAG), s(S_TAG))
    I("v_bfe_u32", v(V_T + 2), v(V_N), 2, 1)
    I("v_lshlrev_b32", v(V_T + 2), 8, v(V_T + 2))
    I("v_lshlrev_b32", v(V_T + 3), 6, v(V_G))
    I("v_add_u32", v(V_T + 2), v(V_T + 2), v(V_T + 3))
    I("v_and_b32", v(V_T + 3), 3, v(V_N))
    I("v_lshlrev_b32", v(V_T + 3), 4, v(V_T + 3))
    I("v_add_u32", v(V_T + 2), v(V_T + 2), v(V_T + 3))
    I("ds_read_b128", v(V_A, 4), v(V_T + 2), mods=f"offset:{L_QA}")
    I("s_waitcnt", "vmcnt(8) lgkmcnt(0)")
    stamp(6)
    for i in range(8):
        I("v_mfma_f32_16x16x32_bf16", v(V_K + 4 * i, 4), v(V_K + 4 * i, 4), v(V_A, 4), 0)
    for i in range(8):
        d = V_K + 4 * i
        I("v_mov_b32_dpp", v(V_S + i), v(d), mods="quad_perm:[0,0,0,0] row_mask:0xf bank_mask:0xf")
        for r in range(1, 4):
            I("v_add_f32_dpp", v(V_S + i), v(d + r), v(V_S + i), mods=f"quad_perm:[{r},{r},{r},{r}] row_mask:0xf bank_mask:0xf")
    SC = f2u(128 ** -0.5)
    for i in range(0, 8, 2):
        a, b = V_S + i, V_S + i + 1
        I("v_cvt_pk_bf16_f32", v(V_T + 2), v(a), v(b))
        I("v_lshlrev_b32", v(a), 16, v(V_T + 2))
        I("v_and_b32", v(b), "0xffff0000", v(V_T + 2))
        I("v_mul_f32", v(a), hex(SC), v(a))
        I("v_mul_f32", v(b), hex(SC), v(b))
        I("v_cvt_pk_bf16_f32", v(V_T + 2), v(a), v(b))
        I("v_lshlrev_b32", v(a), 16, v(V_T + 2))
        I("v_and_b32", v(b), "0xffff0000", v(V_T + 2))
    MX, LS = V_ACC, V_ACC + 1
    MX, LS = V_X, V_X + 1
    I("v_max3_f32", v(MX), v(V_S), v(V_S + 1), v(V_S + 2))
    I("v_max3_f32", v(MX), v(MX), v(V_S + 3), v(V_S + 4))
    I("v_max3_f32", v(MX), v(MX), v(V_S + 5), v(V_S + 6))
    I("v_max_f32", v(MX), v(MX), v(V_S + 7))
    x16("v_max_f32", MX, V_T + 2)
    x32("v_max_f32", MX, V_T + 2)
    I("s_mov_b32", s(S_T0), hex(f2u(LOG2E)))
    I("v_mul_f32", v(V_T + 3), s(S_T0), v(MX))
    for i in range(8):
        I("v_fma_f32", v(V_S + i), v(V_S + i), s(S_T0), "-" + v(V_T + 3))
    for i in range(8):
        I("v_exp_f32", v(V_S + i), v(V_S + i))
    for k in range(4):
        I("v_cvt_pk_bf16_f32", v(V_P + k), v(V_S + 2 * k), v(V_S + 2 * k + 1))
    I("v_add_f32", v(LS), v(V_S), v(V_S + 1))
    for i in range(2, 8):
        I("v_add_f32", v(LS), v(LS), v(V_S + i))
    x16("v_add_f32", LS, V_T + 2)
    x32("v_add_f32", LS, V_T + 2)
    for e in range(8):
        for k in range(4):
            I("v_cndmask_b32_e64", v(V_K + 4 * e + k), 0, v(V_P + k), s(S_MASK + 2 * e, 2))
    nI = len(issuers)
    tasks = [(cb, t) for cb in range(5) for t in range(9)]
    per = (len(tasks) + nI - 1) // nI
    I("v_mul_u32_u24", v(V_T + 2), 1152, v(V_G))
    I("v_lshlrev_b32", v(V_T + 3), 4, v(V_N))
    I("v_add_u32", v(V_T + 2), v(V_T + 2), v(V_T + 3))
    I("s_lshl_b32", s(S_T0), s(S_WG), 4)
    I("s_mul_i32", s(S_T0), s(S_T0), 1152)
    I("s_mul_i32", s(S_T1), s(S_F0), 1152)
    Lafter = P.newlabel("cdone")
    counts = {}
    for idx, w in enumerate(issuers):
        Lnext = P.newlabel("cnext")
        I("s_cmp_lg_u32", s(S_W), w)
        I("s_cbranch_scc1", Lnext)
        mine = tasks[idx * per:(idx + 1) * per]
        counts[w] = len(mine)
        cur_mask = None
        for (cb, t) in mine:
            full = 0xFFFFFFFFFFFFFFFF
            mk = full
            if cb == 4: mk &= 0x00FF00FF00FF00FF
            if t == 8: mk &= 0x00000000FFFFFFFF
            if mk != cur_mask:
                if mk == full:
                    I("s_mov_b64", "exec", -1)
                else:
                    I("s_mov_b32", "exec_lo", hex(mk & 0xFFFFFFFF))
                    I("s_mov_b32", "exec_hi", hex(mk >> 32))
                cur_mask = mk
            if t < 4:
                I("s_add_u32", s(S_T2), s(S_T0), 4 * t * 1152 + cb * 256)
                srd_ = SRD_WO
            else:
                I("s_add_u32", s(S_T2), s(S_T1), 4 * (t - 4) * 1152 + cb * 256)
                srd_ = SRD_WD
            I("s_mov_b32", "m0", L_C + (cb * 9 + t) * 1024)
            I("buffer_load_dwordx4", v(V_T + 2), s(srd_, 4), s(S_T2), mods=f"offen {cnt} lds")
        I("s_mov_b64", "exec", -1)
        I("s_waitcnt", f"vmcnt({len(mine)})")
        I("s_branch", Lafter)
        P.label(Lnext)
    I("s_waitcnt", "vmcnt(0)")
    P.label(Lafter)
    stamp(7)
    for e in range(8):
        tb = V_TB + 4 * (e & 1)
        dw = e >> 1
        sel = S_SELHI if (e & 1) else S_SELLO
        for k in range(4):
            I("v_perm_b32", v(tb + k), v(V_V + 4 * (2 * k + 1) + dw), v(V_V + 4 * (2 * k) + dw), s(sel))
        c = "0" if e == 0 else v(V_ACC, 4)
        I("v_mfma_f32_16x16x32_bf16", v(V_ACC, 4), v(V_K + 4 * e, 4), v(tb, 4), c)
    I("v_and_b32", v(V_T + 2), 1, v(V_G))
    I("v_lshlrev_b32", v(V_T + 2), 9, v(V_T + 2))
    I("v_lshlrev_b32", v(V_T + 3), 5, v(V_N))
    I("v_add_u32", v(V_T + 2), v(V_T + 2), v(V_T + 3))
    I("v_lshrrev_b32", v(V_T + 3), 1, v(V_G))
    I("v_lshlrev_b32", v(V_T + 3), 4, v(V_T + 3))
    I("v_add_u32", v(V_T + 2), v(V_T + 2), v(V_T + 3))
    I("s_lshl_b32", s(S_T0), s(S_W), 10)
    I("v_add_u32", v(V_T + 2), s(S_T0), v(V_T + 2))
    I("v_bfe_u32", v(V_T + 3), v(V_N), 2, 1)
    I("v_lshlrev_b32", v(V_T + 3), 3, v(V_T + 3))
    I("s_lshl_b32", s(S_T0), s(S_W), 4)
    I("v_add_u32", v(V_T + 3), s(S_T0), v(V_T + 3))
    I("s_mov_b64", "exec", "0x11")
    I("ds_write_b64", v(V_T + 3), v(MX, 2), mods=f"offset:{L_ST}")
    I("s_mov_b64", "exec", -1)
    I("ds_write_b128", v(V_T + 2), v(V_ACC, 4), mods=f"offset:{L_OW}")
    I("s_waitcnt", "lgkmcnt(0)")
    I("s_barrier")
    stamp(8)

    I("s_cmp_lt_u32", s(S_W), 5)
    I("s_cbranch_scc1", "L_stagec")
    I("s_cmp_eq_u32", s(S_W), 5)
    I("s_cbranch_scc1", "L_combine")
    I("s_cmp_eq_u32", s(S_W), 6)
    I("s_cbranch_scc1", "L_combine")
    for w in issuers:
        I("s_cmp_eq_u32", s(S_W), w)
        I("s_cbranch_scc1", "L_cland")
    I("s_branch", "L_final")
    P.label("L_cland")
    I("s_waitcnt", "vmcnt(0)")
    lds_inc(L_CNT + C_C)
    stamp(9)
    I("s_branch", "L_final")

    P.label("L_combine")
    I("s_sub_u32", s(S_T3), s(S_W), 5)
    I("v_lshlrev_b32", v(V_T + 2), 4, v(V_N))
    I("s_lshl_b32", s(S_T0), s(S_T3), 3)
    I("v_add_u32", v(V_T + 2), s(S_T0), v(V_T + 2))
    I("ds_read_b64", v(V_A, 2), v(V_T + 2), mods=f"offset:{L_ST}")
    I("v_lshlrev_b32", v(V_T + 3), 3, v(V_LANE))
    I("s_lshl_b32", s(S_T0), s(S_T3), 9)
    I("v_add_u32", v(V_T + 3), s(S_T0), v(V_T + 3))
    for k in range(16):
        I("ds_read_b64", v(V_K + 2 * k, 2), v(V_T + 3), mods=f"offset:{L_OW + 1024 * k}")
    I("s_waitcnt", "lgkmcnt(15)")
    Mx, Wt, Lx = V_A + 2, V_A + 3, V_A + 1
    I("v_mov_b32", v(Mx), v(V_A))
    row_allreduce("v_max_f32", Mx, None)
    I("v_sub_f32", v(Wt), v(V_A), v(Mx))
    I("s_mov_b32", s(S_T0), hex(f2u(LOG2E)))
    I("v_mul_f32", v(Wt), s(S_T0), v(Wt))
    I("v_exp_f32", v(Wt), v(Wt))
    I("v_mul_f32", v(Lx), v(Lx), v(Wt))
    row_allreduce("v_add_f32", Lx, None)
    for k in range(16):
        I("v_readlane_b32", s(KA + k), v(Wt), k)
    I("s_waitcnt", "lgkmcnt(0)")
    O0, O1 = V_ACC, V_ACC + 1
    I("v_mul_f32", v(O0), s(KA), v(V_K))
    I("v_mul_f32", v(O1), s(KA), v(V_K + 1))
    for k in range(1, 16):
        I("v_fmac_f32", v(O0), s(KA + k), v(V_K + 2 * k))
        I("v_fmac_f32", v(O1), s(KA + k), v(V_K + 2 * k + 1))
    I("v_mov_b32", v(V_ACC + 2), v(Mx))
    I("v_mov_b32", v(V_ACC + 3), v(Lx))
    tag_encode([V_ACC + c for c in range(4)])
    I("v_lshlrev_b32", v(V_T + 2), 4, v(V_LANE))
    I("s_lshl_b32", s(S_T0), s(S_WG), 11)
    I("s_lshl_b32", s(S_T1), s(S_T3), 10)
    I("s_add_u32", s(S_T0), s(S_T0), s(S_T1))
    I("s_add_u32", s(S_T0), s(S_T0), WS_O)
    I("buffer_store_dwordx4", v(V_ACC, 4), v(V_T + 2), s(SRD_WS, 4), s(S_T0), mods="offen sc1")
    stamp(9)
    I("s_cmp_eq_u32", s(S_W), 6)
    I("s_cbranch_scc1", "L_final")
    I("v_lshrrev_b32", v(V_T + 2), 3, v(V_LANE))
    I("v_lshlrev_b32", v(V_T + 2), 11, v(V_T + 2))
    I("v_and_b32", v(V_T + 3), 7, v(V_LANE))
    I("v_lshlrev_b32", v(V_T + 4), 4, v(V_T + 3))
    I("v_add_u32", v(V_T + 2), v(V_T + 2), v(V_T + 4))
    I("s_lshl_b32", s(S_T0), s(S_H), 15)
    I("s_lshl_b32", s(S_T1), s(S_B), 10)
    I("s_add_u32", s(S_T0), s(S_T0), s(S_T1))
    I("s_and_b32", s(S_T1), s(S_M), 7)
    I("s_lshl_b32", s(S_T1), s(S_T1), 7)
    I("s_add_u32", s(S_T0), s(S_T0), s(S_T1))
    I("s_add_u32", s(S_T0), s(S_T0), WS_O)
    I("s_add_u32", s(S_T1), s(S_T0), 8 * 2048)
    I("s_mov_b32", s(S_SP), 0)
    P.label("L_opoll")
    I("buffer_load_dwordx4", v(V_K, 4), v(V_T + 2), s(SRD_WS, 4), s(S_T0), mods="offen sc1")
    I("buffer_load_dwordx4", v(V_K + 4, 4), v(V_T + 2), s(SRD_WS, 4), s(S_T1), mods="offen sc1")
    I("s_waitcnt", "vmcnt(0)")
    tag_check([V_K + c for c in range(8)], V_T + 6, V_T + 7)
    I("v_and_b32", v(V_T + 6), s(S_TMASK), v(V_T + 6))
    I("v_cmp_ne_u32", "vcc", 0, v(V_T + 6))
    I("s_cbranch_vccz", "L_ook")
    I("s_add_u32", s(S_SP), s(S_SP), 1)
    I("s_cmp_lt_u32", s(S_SP), SPIN_MAX)
    I("s_cbranch_scc1", "L_opoll")
    P.label("L_ook")
    stamp(10)
    tag_strip([V_K + c for c in range(8)])
    I("s_mov_b32", s(S_T2), hex(f2u(LOG2E)))
    for b in range(2):
        o0, o1, mm, ll = V_K + 4 * b, V_K + 4 * b + 1, V_K + 4 * b + 2, V_K + 4 * b + 3
        M_ = V_A
        I("v_mov_b32", v(M_), v(mm))
        x8("v_max_f32", M_)
        x16("v_max_f32", M_, V_A + 1)
        x32("v_max_f32", M_, V_A + 1)
        I("v_sub_f32", v(mm), v(mm), v(M_))
        I("v_mul_f32", v(mm), s(S_T2), v(mm))
        I("v_exp_f32", v(mm), v(mm))
        for r in (o0, o1, ll):
            I("v_mul_f32", v(r), v(r), v(mm))
        for r in (o0, o1, ll):
            x8("v_add_f32", r)
            x16("v_add_f32", r, V_A + 1)
            x32("v_add_f32", r, V_A + 1)
        I("v_rcp_f32", v(mm), v(ll))
        for r in (o0, o1):
            I("v_mul_f32", v(V_A + 1), v(r), v(mm))
            I("v_fma_f32", v(V_A + 2), "-" + v(V_A + 1), v(ll), v(r))
            I("v_fma_f32", v(r), v(V_A + 2), v(mm), v(V_A + 1))
        I("v_cvt_pk_bf16_f32", v(V_ACC + b), v(o0), v(o1))
    I("v_lshlrev_b32", v(V_T + 4), 1, v(V_T + 3))
    I("v_and_b32", v(V_T + 5), 3, v(V_T + 4))
    I("v_lshlrev_b32", v(V_T + 5), 3, v(V_T + 5))
    I("v_lshrrev_b32", v(V_T + 4), 2, v(V_T + 4))
    I("v_lshlrev_b32", v(V_T + 4), 1, v(V_T + 4))
    I("v_add_u32", v(V_T + 4), v(V_T + 4), v(V_T + 5))
    I("s_mov_b64", "exec", "0xff")
    for b in range(2):
        I("ds_write_b16", v(V_T + 4), v(V_ACC + b), mods=f"offset:{L_OA + 32 * b}")
        I("ds_write_b16_d16_hi", v(V_T + 4), v(V_ACC + b), mods=f"offset:{L_OA + 32 * b + 8}")
    I("s_mov_b64", "exec", -1)
    I("v_mov_b32", v(V_T), L_CNT + C_O)
    I("v_mov_b32", v(V_T + 1), 1)
    I("ds_write_b32", v(V_T), v(V_T + 1))
    I("s_branch", "L_final")

    P.label("L_stagec")
    RAW, BWD, BWO = V_K, 76, 108
    lds_spin(L_CNT + C_C, nI, "cc")
    I("s_mul_i32", s(S_T0), s(S_W), 9 * 1024)
    I("v_lshlrev_b32", v(V_T + 2), 4, v(V_LANE))
    I("v_add_u32", v(V_T + 2), s(S_T0), v(V_T + 2))
    for t in range(9):
        I("ds_read_b128", v(RAW + 4 * t, 4), v(V_T + 2), mods=f"offset:{L_C + 1024 * t}")
    I("v_bfe_u32", v(V_T + 3), v(V_N), 2, 1)
    I("v_lshlrev_b32", v(V_T + 4), 6, v(V_T + 3))
    I("v_lshlrev_b32", v(V_T + 5), 4, v(V_G))
    I("v_add_u32", v(V_T + 4), v(V_T + 4), v(V_T + 5))
    I("ds_read_b128", v(V_A, 4), v(V_T + 4), mods=f"offset:{L_HA}")
    I("v_lshlrev_b32", v(V_T + 4), 5, v(V_T + 3))
    I("v_lshlrev_b32", v(V_T + 5), 3, v(V_G))
    I("v_add_u32", v(V_T + 6), v(V_T + 4), v(V_T + 5))
    I("s_waitcnt", "lgkmcnt(0)")
    I("s_mov_b32", s(S_X0), -1)
    I("s_mov_b32", s(S_X1), 0)
    for c in range(4):
        I("v_cndmask_b32_e64", v(RAW + 32 + c), 0, v(RAW + 32 + c), s(S_X0, 2))
    I("v_mov_b32", v(V_T + 7), 0)
    for e in range(8):
        dw = e >> 1
        sel = S_SELHI if (e & 1) else S_SELLO
        W = lambda t: RAW + 4 * t + dw
        I("v_perm_b32", v(BWD + 4 * e), v(W(5)), v(W(4)), s(sel))
        I("v_perm_b32", v(BWD + 4 * e + 1), v(W(7)), v(W(6)), s(sel))
        I("v_perm_b32", v(BWD + 4 * e + 2), v(V_T + 7), v(W(8)), s(sel))
        I("v_mov_b32", v(BWD + 4 * e + 3), 0)
        I("v_perm_b32", v(BWO + 2 * e), v(W(1)), v(W(0)), s(sel))
        I("v_perm_b32", v(BWO + 2 * e + 1), v(W(3)), v(W(2)), s(sel))
    masked_gemv(V_A, 4, lambda e: BWD + 4 * e, V_ACC, True, "v_mfma_f32_16x16x32_bf16", [V_S, V_S + 4])
    PA, PA1 = V_K, V_K + 1
    I("v_lshrrev_b32", v(PA), 1, v(V_N))
    I("v_lshlrev_b32", v(PA), 7, v(PA))
    I("v_and_b32", v(PA1), 1, v(V_G))
    I("v_lshlrev_b32", v(PA1), 6, v(PA1))
    I("v_add_u32", v(PA), v(PA), v(PA1))
    I("v_and_b32", v(PA1), 1, v(V_N))
    I("v_lshlrev_b32", v(PA1), 5, v(PA1))
    I("v_add_u32", v(PA), v(PA), v(PA1))
    I("v_lshrrev_b32", v(PA1), 1, v(V_G))
    I("v_lshlrev_b32", v(PA1), 4, v(PA1))
    I("v_add_u32", v(PA), v(PA), v(PA1))
    I("s_mul_i32", s(S_T1), s(S_WG), 4608)
    I("s_lshl_b32", s(S_T2), s(S_W), 10)
    I("s_add_u32", s(S_T1), s(S_T1), s(S_T2))
    I("s_add_u32", s(S_T3), s(S_T1), WS_P)
    stamp(9)
    lds_spin(L_CNT + C_O, 1, "co", sleep=0)
    I("ds_read_b64", v(V_A, 2), v(V_T + 6), mods=f"offset:{L_OA}")
    I("s_waitcnt", "lgkmcnt(0)")
    masked_gemv(V_A, 2, lambda e: BWO + 2 * e, V_ACC, False, "v_mfma_f32_16x16x16_bf16", [V_S, V_S + 2, V_S + 4, V_S + 6])
    tag_encode([V_ACC + c for c in range(4)])
    Lfull = P.newlabel("pfull")
    I("s_cmp_lg_u32", s(S_W), 4)
    I("s_cbranch_scc1", Lfull)
    I("s_mov_b32", "exec_lo", "0x00ff00ff")
    I("s_mov_b32", "exec_hi", "0x00ff00ff")
    P.label(Lfull)
    I("buffer_store_dwordx4", v(V_ACC, 4), v(PA), s(SRD_WS, 4), s(S_T3), mods="offen sc1")
    I("s_mov_b64", "exec", -1)
    stamp(10)

    P.label("L_final")
    I("s_cmp_lt_u32", s(S_M), 11)
    I("s_cbranch_scc1", "L_end")
    I("s_bitcmp1_b32", s(S_M), 0)
    I("s_cbranch_scc0", "L_end")
    I("s_cmp_ge_u32", s(S_H), 12)
    I("s_cbranch_scc1", "L_end")
    I("s_sub_u32", s(S_T0), s(S_M), 11)
    I("s_lshr_b32", s(S_T0), s(S_T0), 1)
    I("s_mul_i32", s(S_RHO), s(S_H), 3)
    I("s_add_u32", s(S_RHO), s(S_RHO), s(S_T0))
    I("v_bfe_u32", v(V_X), v(V_LANE), 4, 1)
    I("v_mul_u32_u24", v(V_X), 576, v(V_X))
    I("v_and_b32", v(V_X + 1), 15, v(V_LANE))
    I("v_add_u32", v(V_X), v(V_X), v(V_X + 1))
    I("s_lshl_b32", s(S_T0), s(S_RHO), 4)
    I("v_add_u32", v(V_X), s(S_T0), v(V_X))
    I("v_lshlrev_b32", v(V_X), 1, v(V_X))
    I("buffer_load_ushort", v(V_X + 2), v(V_X), s(SRD_X, 4), 0, mods="offen")
    I("v_lshrrev_b32", v(V_T + 2), 3, v(V_TID))
    I("v_mul_u32_u24", v(V_T + 2), 4608, v(V_T + 2))
    I("v_and_b32", v(V_T + 3), 7, v(V_TID))
    I("v_lshlrev_b32", v(V_T + 3), 4, v(V_T + 3))
    I("v_add_u32", v(V_T + 2), v(V_T + 2), v(V_T + 3))
    I("s_lshl_b32", s(S_T0), s(S_RHO), 7)
    I("s_add_u32", s(S_T0), s(S_T0), WS_P)
    I("s_add_u32", s(S_T1), s(S_T0), 128 * 4608)
    I("s_mov_b32", s(S_SP), 0)
    P.label("L_fpoll")
    I("buffer_load_dwordx4", v(V_K, 4), v(V_T + 2), s(SRD_WS, 4), s(S_T0), mods="offen sc1")
    I("buffer_load_dwordx4", v(V_K + 4, 4), v(V_T + 2), s(SRD_WS, 4), s(S_T1), mods="offen sc1")
    I("s_waitcnt", "vmcnt(0)")
    tag_check([V_K + c for c in range(8)], V_T + 6, V_T + 7)
    I("v_and_b32", v(V_T + 6), s(S_TMASK), v(V_T + 6))
    I("v_cmp_ne_u32", "vcc", 0, v(V_T + 6))
    I("s_cbranch_vccz", "L_fok")
    I("s_add_u32", s(S_SP), s(S_SP), 1)
    I("s_cmp_lt_u32", s(S_SP), SPIN_MAX)
    I("s_cbranch_scc1", "L_fpoll")
    P.label("L_fok")
    stamp(11)
    tag_strip([V_K + c for c in range(8)])
    for c in range(4):
        I("v_add_f32", v(V_K + c), v(V_K + c), v(V_K + 4 + c))
    for c in range(4):
        x8("v_add_f32", V_K + c)
    for c in range(4):
        x16("v_add_f32", V_K + c, V_T + 6)
    for c in range(4):
        x32("v_add_f32", V_K + c, V_T + 6)
    I("v_and_b32", v(V_T + 3), 7, v(V_LANE))
    I("v_lshlrev_b32", v(V_T + 3), 4, v(V_T + 3))
    I("s_lshl_b32", s(S_T0), s(S_W), 7)
    I("v_add_u32", v(V_T + 3), s(S_T0), v(V_T + 3))
    I("s_mov_b64", "exec", "0xff")
    I("ds_write_b128", v(V_T + 3), v(V_K, 4), mods=f"offset:{L_RED}")
    I("s_mov_b64", "exec", -1)
    I("s_waitcnt", "lgkmcnt(0)")
    I("s_barrier")
    I("s_cmp_lg_u32", s(S_W), 0)
    I("s_cbranch_scc1", "L_end")
    I("v_and_b32", v(V_T + 3), 31, v(V_LANE))
    I("v_lshlrev_b32", v(V_T + 3), 2, v(V_T + 3))
    for k in range(16):
        I("ds_read_b32", v(V_K + k), v(V_T + 3), mods=f"offset:{L_RED + 128 * k}")
    I("s_waitcnt", "lgkmcnt(0)")
    for st in (8, 4, 2, 1):
        for k in range(st):
            I("v_add_f32", v(V_K + k), v(V_K + k), v(V_K + k + st))
    I("v_lshlrev_b32", v(V_X + 2), 16, v(V_X + 2))
    I("v_add_f32", v(V_K), v(V_K), v(V_X + 2))
    I("v_cvt_pk_bf16_f32", v(V_K), v(V_K), v(V_K))
    I("s_mov_b32", "exec_lo", -1)
    I("s_mov_b32", "exec_hi", 0)
    I("buffer_store_short", v(V_K), v(V_X), s(SRD_OUT, 4), 0, mods="offen")
    I("s_cmp_lg_u32", s(S_RHO), 0)
    I("s_cbranch_scc1", "L_end")
    I("s_add_u32", s(S_T0), s(S_EPOCH), 1)
    I("v_mov_b32", v(V_T + 2), s(S_T0))
    I("v_mov_b32", v(V_T + 3), WS_EPOCH)
    I("s_mov_b64", "exec", 1)
    I("buffer_store_dword", v(V_T + 2), v(V_T + 3), s(SRD_WS, 4), 0, mods="offen")
    stamp(12)
    P.label("L_end")
    I("s_endpgm")

    tail = []
    tail.append('.section .rodata,"a"')
    tail.append(".p2align 6")
    tail.append(f".amdhsa_kernel {KNAME}")
    tail.append("  .amdhsa_next_free_vgpr 128")
    tail.append("  .amdhsa_next_free_sgpr 102")
    tail.append("  .amdhsa_accum_offset 128")
    tail.append("  .amdhsa_group_segment_fixed_size 0")
    tail.append("  .amdhsa_kernarg_size 96")
    tail.append("  .amdhsa_user_sgpr_count 2")
    tail.append("  .amdhsa_user_sgpr_kernarg_segment_ptr 1")
    tail.append("  .amdhsa_system_sgpr_workgroup_id_x 1")
    tail.append("  .amdhsa_float_denorm_mode_32 3")
    tail.append(".end_amdhsa_kernel")
    return "\n".join(hdr) + "\n" + P.text() + "\n".join(tail) + "\n"


if __name__ == "__main__":
    out = sys.argv[1] if len(sys.argv) > 1 else "cdna_kernels/%s.s" % NAME
    st = "--stamps" in sys.argv
    open(out, "w").write(gen(stamps=st))
    print("wrote", out)
```
